```python
import torch

def _softmax(x, axis=-1):
    return torch.softmax(x, dim=axis)
def _gelu(x):
    return torch.nn.functional.gelu(x, approximate="tanh")
def _silu(x):
    return torch.nn.functional.silu(x)
def _sigmoid(x):
    return torch.sigmoid(x)
def _layernorm(x, axis=-1, eps=1e-5):
    m = x.mean(dim=axis, keepdim=True)
    v = x.var(dim=axis, keepdim=True, unbiased=False)
    return (x - m) / torch.sqrt(v + eps)
def _scatter_add(tgt, idx, src, axis=0):
    return tgt.clone().index_add_(axis, idx, src)
def _segment_sum(src, seg, n):
    out = torch.zeros((n,) + src.shape[1:], dtype=src.dtype)
    return out.index_add_(0, seg, src)
def _pad(x, pw):
    flat = tuple(v for pair in reversed(pw) for v in pair)
    return torch.nn.functional.pad(x, flat)

kernel_name = 'concat_heads__ssm_conv_h3__sliding_block__prompt'

def setup_inputs():

    _w = (lambda a: (lambda t: t.to(torch.bfloat16) if t.is_floating_point() else t)(torch.as_tensor(a)))
    def _A_setup():
        B, S, D = 1, 2048, 512
        ks = 4
        return {
            "q": _w((lambda *s: torch.randn(*s, dtype=torch.bfloat16) * 0.05)(B, S, D)),
            "k": _w((lambda *s: torch.randn(*s, dtype=torch.bfloat16) * 0.8)(B, S, D)),
            "v": _w((lambda *s: torch.randn(*s, dtype=torch.bfloat16) * 0.8)(B, S, D)),
            "shift_k": _w((lambda *s: torch.randn(*s, dtype=torch.bfloat16) * 0.8)(D, ks) * 0.5),
            "ssm_k": _w((lambda *s: torch.randn(*s, dtype=torch.bfloat16) * 1.6)(D, S) * (1.0 / S ** 0.5)),
            "ssm_D": _w((lambda *s: torch.randn(*s, dtype=torch.bfloat16) * 0.8)(D)),
        }
    _A_in = _A_setup()

    def _B_setup():
        B, S, D = 1, 2048, 512
        return {
            "x": _w((lambda *s: torch.randn(*s, dtype=torch.bfloat16) * 0.2)(B, S, D)),
            "wqkv": _w((lambda *s: torch.randn(*s, dtype=torch.bfloat16) * 0.2)(D, 3 * D)),
            "wo": _w((lambda *s: torch.randn(*s, dtype=torch.bfloat16) * 0.05)(D, D)),
        }
    _B_in = _B_setup()

    return {
        "A_q": _A_in["q"],
        "A_k": _A_in["k"],
        "A_v": _A_in["v"],
        "A_shift_k": _A_in["shift_k"],
        "A_ssm_k": _A_in["ssm_k"],
        "A_ssm_D": _A_in["ssm_D"],
        "B_x": _B_in["x"],
        "B_wqkv": _B_in["wqkv"],
        "B_wo": _B_in["wo"],
    }

def reference(A_q, A_k, A_v, A_shift_k, A_ssm_k, A_ssm_D, B_x, B_wqkv, B_wo):
    def _A_ref(q, k, v, shift_k, ssm_k, ssm_D):
        B, S, D = q.shape
        ks = shift_k.shape[-1]
        k_pad = _pad(k, ((0, 0), (ks - 1, 0), (0, 0)))
        k_shift = torch.zeros_like(k)
        for t in range(ks):
            k_shift = k_shift + k_pad[:, t:t + S, :] * shift_k[:, ks - 1 - t][None, None, :]
        kv = k_shift * v
        L = 2 * S
        kv_pad = _pad(kv, ((0, 0), (0, S), (0, 0)))
        kf_pad = _pad(ssm_k, ((0, 0), (0, S)))
        kv_f = (lambda x, axes=(-2,-1): torch.fft.rfft2(x.float(), dim=axes))(kv_pad[:, None, :, :], axes=(1, 2))
        kf_f = (lambda x, axes=(-2,-1): torch.fft.rfft2(x.float(), dim=axes))(kf_pad[:, None, :], axes=(1, 2))
        kf_f = (lambda x, *d: x.permute(*d))(kf_f, 1, 2, 0)
        y_f = kv_f * kf_f[None, :, :, :]
        y = (lambda x, s, axes=(-2,-1): torch.fft.irfft2(x, s=s, dim=axes).to(torch.bfloat16))(y_f, (1, L), axes=(1, 2))[:, 0, :S, :]
        y = y + kv * ssm_D[None, None, :]
        return q * y

    def _B_ref(x, wqkv, wo):
        B, S, D = x.shape
        H = 32; Dh = D // H; W = 256
        qkv = (lambda x, *d: x.permute(*d))((x @ wqkv).reshape(B, S, 3, H, Dh), 2, 0, 3, 1, 4)
        q, k, v = qkv[0], qkv[1], qkv[2]
        scores = torch.einsum("bhqd,bhkd->bhqk", q, k) * (Dh ** -0.5)
        idx = torch.arange(S)
        mask = (idx[:, None] - idx[None, :] >= 0) & (idx[:, None] - idx[None, :] < W)
        scores = torch.where(mask[None, None], scores, -1e9)
        p = _softmax(scores, axis=-1)
        o = torch.einsum("bhqk,bhkd->bhqd", p, v)
        return (lambda x, *d: x.permute(*d))(o, 0, 2, 1, 3).reshape(B, S, D) @ wo

    a = _A_ref(A_q, A_k, A_v, A_shift_k, A_ssm_k, A_ssm_D)
    b = _B_ref(B_x, B_wqkv, B_wo)
    return torch.concatenate([a, b], axis=-1)
```

```python
import sys, os, json

NAME = "concat_heads__ssm_conv_h3__sliding_block__prompt"

class Cfg:
    stamps = False
    xf = "nt"
    wf = ""
    af = "nt"
    wof = ""
    ahead = 10
    a1_at = 1
    force_slow = False
    spin = 200000
    kvflag_at = 1
    zflag_at = 6
    oflag_at = 6
    order = None

WS_KV = 0x000000
WS_O = 0x400000
WS_U = 0x600000
WS_FKV = 0x800000
WS_FU = 0x810000
WS_FZ = 0x820000
WS_FO = 0x830000
WS_NONCE = 0x850000
WS_STAMP = 0x900000
WS_SIZE = 0xA00000
FS = 32

L_XR = 0
L_WR = 65536
L_REC = 32768
REC = 2064
L_TAB = 82432
L_PF = 84480
L_KT = 98304
GS = 1040
L_U = 98304
US = 4352
L_H = 98304 + 17 * GS + 240
HS = 17664
L_WO = 98304
L_RED = 0
L_QT = 16384
L_ST = 25600
LDS_SIZE = 163840
assert L_H % 256 == 0 and L_H + 2 * HS <= LDS_SIZE

class Asm:
    def __init__(self):
        self.lines = []
        self.nlab = 0
        self.vm = 0
    def __call__(self, s):
        for l in s.strip("\n").split("\n"):
            l = l.strip()
            if l:
                self.lines.append(l)
    def lab(self, p="L"):
        self.nlab += 1
        return f"{p}_{self.nlab}"
    def vmem(self, s):
        self(s)
        self.vm += 1
        return self.vm
    def waitvm(self, op, extra=""):
        n = self.vm - op
        assert 0 <= n <= 63, n
        self(f"s_waitcnt vmcnt({n}) {extra}")

def vr(a, n):
    return f"v[{a}:{a+n-1}]" if n > 1 else f"v{a}"
def sr(a, n):
    return f"s[{a}:{a+n-1}]"

S_WG, S_WAVE, S_XCD, S_IDX, S_R2, S_SL, S_ROT, S_W, S_NONCE = 2, 3, 4, 5, 6, 7, 8, 9, 10
S_T0, S_T1, S_T2, S_T3, S_T4 = 11, 12, 13, 14, 15
P_Q, P_K, P_V, P_SK, P_H, P_D, P_X, P_W, P_WO, P_OUT, P_DBG, P_WS = 16, 18, 20, 22, 24, 26, 28, 30, 32, 34, 36, 38
R_WS, R_A, R_B, R_C, R_D, R_E, R_F, R_G = 40, 44, 48, 52, 56, 60, 64, 68
S_CLK = 72
S_A0 = 76

def srd(a, r, p, size):
    a(f"s_mov_b32 s{r}, s{p}\ns_mov_b32 s{r+1}, s{p+1}\ns_mov_b32 s{r+2}, {size}\ns_mov_b32 s{r+3}, 0x20000")

V_STAMP = 63
def stamp(a, c, i):
    if c.stamps:
        a(f"s_memtime s[74:75]\ns_waitcnt lgkmcnt(0)\ns_sub_u32 s74, s74, s72\nv_writelane_b32 v{V_STAMP}, s74, {i}")

def dump_stamps(a, c):
    if c.stamps:
        a(f"""
        s_memrealtime s[74:75]
        s_waitcnt lgkmcnt(0)
        v_writelane_b32 v{V_STAMP}, s74, 63
        s_lshl_b32 s{S_T0}, s{S_WG}, 3
        s_add_u32 s{S_T0}, s{S_T0}, s{S_WAVE}
        s_lshl_b32 s{S_T0}, s{S_T0}, 8
        s_add_u32 s{S_T0}, s{S_T0}, {WS_STAMP}
        v_lshlrev_b32 v1, 2, v0
        buffer_store_dword v{V_STAMP}, v1, {sr(R_WS,4)}, s{S_T0} offen
        s_waitcnt vmcnt(0)
        """)

def nonce_issue(a, vdst, vz):
    a(f"v_mov_b32 v{vz}, 0")
    return a.vmem(f"global_load_dword v{vdst}, v{vz}, {sr(P_DBG,2)} sc1")

def nonce_check(a, c, op, vdst, vz):
    l, e = a.lab("Lnon"), a.lab("Lnone")
    a.waitvm(op)
    a(f"""
    v_readfirstlane_b32 s{S_NONCE}, v{vdst}
    s_mov_b32 s{S_T0}, 0
    s_cmp_lg_u32 s{S_NONCE}, 0
    s_cbranch_scc1 {e}
    v_mov_b32 v{vz}, 0
    {l}:
    global_load_dword v{vdst}, v{vz}, {sr(P_DBG,2)} sc1
    s_add_u32 s{S_T0}, s{S_T0}, 1
    s_waitcnt vmcnt(0)
    v_readfirstlane_b32 s{S_NONCE}, v{vdst}
    s_cmp_gt_u32 s{S_T0}, {c.spin}
    s_cbranch_scc1 {e}
    s_cmp_eq_u32 s{S_NONCE}, 0
    s_cbranch_scc1 {l}
    {e}:
    """)

def poll_issue(a, vdst, vaddr, soff):
    return a.vmem(f"buffer_load_dword v{vdst}, v{vaddr}, {sr(R_WS,4)}, s{soff} offen sc1")

def poll_check(a, c, op, vdst, vaddr, soff):
    l, e = a.lab("Lpoll"), a.lab("Lpolle")
    a.waitvm(op)
    a(f"""
    v_cmp_ne_u32 vcc, s{S_NONCE}, v{vdst}
    s_mov_b32 s{S_T0}, 0
    s_nop 0
    s_cbranch_vccz {e}
    {l}:
    buffer_load_dword v{vdst}, v{vaddr}, {sr(R_WS,4)}, s{soff} offen sc1
    s_add_u32 s{S_T0}, s{S_T0}, 1
    s_waitcnt vmcnt(0)
    v_cmp_ne_u32 vcc, s{S_NONCE}, v{vdst}
    s_cmp_gt_u32 s{S_T0}, {c.spin}
    s_cbranch_scc1 {e}
    s_cbranch_vccnz {l}
    {e}:
    """)

def flag_store(a, vn, soff):
    a("s_mov_b64 exec, 1")
    a.vmem(f"buffer_store_dword v{vn}, off, {sr(R_WS,4)}, s{soff} sc1")
    a("s_mov_b64 exec, -1")

def prologue(a, c):
    a(f"""
    s_cmp_ge_u32 s2, 256
    s_cbranch_scc1 L_end
    s_load_dwordx16 s[16:31], s[0:1], 0
    s_load_dwordx8 s[32:39], s[0:1], 64
    """)
    if c.stamps:
        a(f"s_memtime s[72:73]\ns_memrealtime s[74:75]\nv_mov_b32 v{V_STAMP}, 0")
    a(f"""
    v_lshrrev_b32 v1, 6, v0
    v_and_b32 v0, 63, v0
    v_readfirstlane_b32 s{S_WAVE}, v1
    s_and_b32 s{S_XCD}, s2, 7
    s_lshr_b32 s{S_IDX}, s2, 3
    s_lshr_b32 s{S_R2}, s{S_IDX}, 4
    s_lshl_b32 s{S_T0}, s{S_XCD}, 1
    s_add_u32 s{S_R2}, s{S_R2}, s{S_T0}
    s_and_b32 s{S_SL}, s{S_IDX}, 15
    s_lshl_b32 s{S_ROT}, s{S_R2}, 2
    s_add_u32 s{S_ROT}, s{S_ROT}, s{S_SL}
    s_add_u32 s{S_ROT}, s{S_ROT}, s{S_XCD}
    s_and_b32 s{S_ROT}, s{S_ROT}, 7
    s_and_b32 s{S_W}, s{S_WAVE}, 3
    s_cmp_ge_u32 s{S_WAVE}, 4
    s_cbranch_scc0 L_compute
    """)

def helper(a, c):
    a.vm = 0
    XV, WV, QV, TV, LV, PV = 2, 6, 8, 9, 10, 11
    FV, FD = 12, 13
    OV = 14
    HX = 16
    HT = 40
    HA = 56
    S_XB, S_WB, S_QB, S_XO, S_WO2, S_M, S_KB, S_FU, S_FK = range(S_A0, S_A0 + 9)
    R_X, R_W, R_K, R_V, R_H, R_Q, R_WO = R_A, R_B, R_C, R_D, R_E, R_F, R_G
    a(f"""
    v_lshrrev_b32 v1, 3, v0
    v_and_b32 v{PV}, 7, v0               ; chunk'
    v_lshrrev_b32 v{FV}, 4, v0           ; (row>>1)
    v_xor_b32 v{FD}, v{PV}, v{FV}
    v_lshlrev_b32 v{FD}, 4, v{FD}
    v_lshl_add_u32 v{XV}, v1, 10, v{FD}
    v_xor_b32 v{XV+1}, 64, v{XV}
    v_add_u32 v{XV+1}, 7168, v{XV+1}
    v_add_u32 v{XV+2}, 14336, v{XV}
    v_add_u32 v{XV+3}, 14336, v{XV+1}
    v_and_b32 v{FD}, 1, v{FV}
    v_lshlrev_b32 v{FD}, 2, v{FD}
    v_xor_b32 v{FD}, v{FD}, v{PV}
    v_lshlrev_b32 v{FD}, 4, v{FD}
    v_mul_u32_u24 v{WV}, 3072, v1
    v_add_u32 v{WV}, v{WV}, v{FD}
    v_add_u32 v{WV+1}, {8*3072-1024}, v{WV}
    s_lshl_b32 s{S_XB}, s{S_R2}, 2
    s_add_u32 s{S_XB}, s{S_XB}, s{S_W}
    s_lshl_b32 s{S_XB}, s{S_XB}, 15
    s_mul_i32 s{S_QB}, s{S_W}, {16*3072}
    s_lshl_b32 s{S_WB}, s{S_SL}, 7
    s_add_u32 s{S_WB}, s{S_WB}, 1024
    s_add_u32 s{S_WB}, s{S_WB}, s{S_QB}
    s_lshl_b32 s{S_T0}, s{S_SL}, 6
    s_add_u32 s{S_QB}, s{S_QB}, s{S_T0}
    s_waitcnt lgkmcnt(0)
    """)
    srd(a, R_X, P_X, 0x200000)
    srd(a, R_W, P_W, 0x180000)
    if c.stamps:
        a(f"v_writelane_b32 v{V_STAMP}, s74, 62")

    done_bar = [-1]
    ops = {}
    def grp_S(j):
        def head():
            assert done_bar[0] >= j - 3, (j, done_bar)
            a(f"""
            s_add_u32 s{S_T0}, s{S_ROT}, {j}
            s_and_b32 s{S_T0}, s{S_T0}, 7
            s_lshl_b32 s{S_XO}, s{S_T0}, 7
            s_add_u32 s{S_XO}, s{S_XO}, s{S_XB}
            s_mul_i32 s{S_WO2}, s{S_T0}, {64*3072}
            s_add_u32 s{S_WO2}, s{S_WO2}, s{S_WB}
            """)
        def xl(i, setm):
            def f():
                if i == 0: head()
                if setm:
                    a(f"s_lshl_b32 s{S_M}, s{S_W}, 12\ns_add_u32 m0, s{S_M}, {L_XR + (j%4)*16384}\ns_nop 0")
                return a.vmem(f"buffer_load_dwordx4 v{XV+i}, {sr(R_X,4)}, s{S_XO} offen offset:{i*1024} {c.xf} lds")
            return f
        def wl(i):
            def f():
                a(f"s_lshl_b32 s{S_M}, s{S_W}, 11\ns_add_u32 m0, s{S_M}, {L_WR + (j%4)*8192}\ns_nop 0")
                return a.vmem(f"buffer_load_dwordx4 v{WV+i}, {sr(R_W,4)}, s{S_WO2} offen offset:{i*1024} {c.wf} lds")
            return f
        return [xl(0, 1), xl(1, 0), wl(0), xl(2, 1), xl(3, 0), wl(1)]
    def grp_Q(h):
        def ql(j):
            def f():
                assert done_bar[0] >= 8 + h - 3
                a(f"""
                s_add_u32 s{S_T0}, s{S_ROT}, {j}
                s_and_b32 s{S_T0}, s{S_T0}, 7
                s_mul_i32 s{S_WO2}, s{S_T0}, {64*3072}
                s_lshl_b32 s{S_M}, s{S_W}, 10
                s_add_u32 m0, s{S_M}, {L_XR + j*4096}
                s_add_u32 s{S_WO2}, s{S_WO2}, s{S_QB}
                """)
                return a.vmem(f"buffer_load_dwordx4 v{QV}, {sr(R_W,4)}, s{S_WO2} offen {c.wf} lds")
            return f
        return [ql(4*h + i) for i in range(4)]
    def grp_setup2():
        def f():
            srd(a, R_WS, P_WS, WS_SIZE)
            srd(a, R_K, P_K, 0x200000)
            srd(a, R_V, P_V, 0x200000)
            srd(a, R_Q, P_Q, 0x200000)
            srd(a, R_WO, P_WO, 0x80000)
            a(f"""
            v_lshrrev_b32 v{FV}, 2, v0
            v_mul_u32_u24 v{QV}, 3072, v{FV}
            v_and_b32 v{FV}, 3, v0
            v_lshl_add_u32 v{QV}, v{FV}, 4, v{QV}
            v_lshlrev_b32 v{FD}, 4, v{PV}
            v_lshl_add_u32 v{TV}, v1, 10, v{FD}
            v_lshlrev_b32 v{LV}, 4, v0
            v_lshrrev_b32 v{FV}, 4, v0
            v_lshlrev_b32 v{FV}, 1, v{FV}
            v_xor_b32 v{FV}, v{FV}, v{PV}
            v_lshlrev_b32 v{FV}, 4, v{FV}
            v_lshl_add_u32 v{OV}, v1, 10, v{FV}
            v_add_u32 v{OV+1}, 7168, v{OV}
            s_lshl_b32 s{S_KB}, s{S_IDX}, 16
            s_lshl_b32 s{S_T0}, s{S_XCD}, 7
            s_add_u32 s{S_KB}, s{S_KB}, s{S_T0}
            s_lshl_b32 s{S_T0}, s2, 1
            s_lshr_b32 s{S_T1}, s{S_W}, 1
            s_add_u32 s{S_T0}, s{S_T0}, s{S_T1}
            s_mul_i32 s{S_T0}, s{S_T0}, 3072
            s_and_b32 s{S_T1}, s{S_W}, 1
            s_lshl_b32 s{S_T1}, s{S_T1}, 9
            s_add_u32 s{S_T0}, s{S_T0}, s{S_T1}
            v_and_b32 v{FV}, 3, v0
            v_lshlrev_b32 v{FV}, 7, v{FV}
            """)
            return a.vmem(f"buffer_load_dword v{FD}, v{FV}, {sr(R_W,4)}, s{S_T0} offen {c.wf}")
        return [f]
    def grp_KT():
        def kl(i):
            def f():
                a(f"""
                s_lshl_b32 s{S_T0}, s{S_W}, 14
                s_add_u32 s{S_T0}, s{S_T0}, s{S_KB}
                s_mul_i32 s{S_M}, s{S_W}, {2*GS}
                s_add_u32 m0, s{S_M}, {L_KT + (1+i)*GS}
                s_add_u32 s{S_T0}, s{S_T0}, {i*8192}
                """)
                return a.vmem(f"buffer_load_dwordx4 v{TV}, {sr(R_K,4)}, s{S_T0} offen {c.af} lds")
            return f
        def vl(i):
            def f():
                a(f"""
                s_lshl_b32 s{S_T0}, s{S_W}, 14
                s_add_u32 s{S_T0}, s{S_T0}, s{S_KB}
                s_mul_i32 s{S_M}, s{S_W}, {2*GS}
                s_add_u32 m0, s{S_M}, {L_KT + (9+i)*GS}
                s_add_u32 s{S_T0}, s{S_T0}, {i*8192}
                """)
                return a.vmem(f"buffer_load_dwordx4 v{TV}, {sr(R_V,4)}, s{S_T0} offen {c.af} lds")
            return f
        def k0():
            a(f"""
            s_sub_u32 s{S_T0}, s{S_KB}, 8192
            s_cmp_eq_u32 s{S_IDX}, 0
            s_cselect_b32 s{S_T0}, 0x10000000, s{S_T0}
            s_lshl_b32 s{S_T1}, s{S_W}, 3
            s_lshl_b32 s{S_T1}, 0xff, s{S_T1}
            s_mov_b32 m0, {L_KT}
            s_mov_b32 exec_lo, 0
            s_mov_b32 exec_hi, s{S_T1}
            """)
            r = a.vmem(f"buffer_load_dwordx4 v{TV}, {sr(R_K,4)}, s{S_T0} offen {c.af} lds")
            a("s_mov_b64 exec, -1")
            return r
        return [k0, kl(0), kl(1), vl(0), vl(1)]
    def grp_H():
        def hl(rd, part):
            def f():
                if rd == 0 and part == 0:
                    a(f"""
                    s_lshl_b32 s{S_T0}, s{S_XCD}, 5
                    s_add_u32 s{S_T0}, s{S_T0}, s{S_IDX}
                    s_lshl_b32 s{S_T0}, s{S_T0}, 1
                    s_lshr_b32 s{S_T1}, s{S_W}, 1
                    s_add_u32 s{S_T0}, s{S_T0}, s{S_T1}
                    s_lshl_b32 s{S_T0}, s{S_T0}, 12
                    s_add_u32 s{R_H}, s{P_H}, s{S_T0}
                    s_addc_u32 s{R_H+1}, s{P_H+1}, 0
                    s_mov_b32 s{R_H+2}, 4096
                    s_mov_b32 s{R_H+3}, 0x20000
                    s_and_b32 s{S_T1}, s{S_W}, 1
                    s_mul_i32 s{S_T1}, s{S_T1}, 137
                    v_add_u32 v{HA}, s{S_T1}, v0
                    v_lshlrev_b32 v{HA+1}, 4, v{HA}
                    """)
                off = rd * 1024 - 272 + 16 * part
                a(f"v_add_u32 v{HA+2}, {off & 0xffffffff:#x}, v{HA+1}")
                if part == 0:
                    return a.vmem(f"buffer_load_dwordx4 {vr(HX+8*rd,4)}, v{HA+2}, {sr(R_H,4)}, 0 offen {c.af}")
                return a.vmem(f"buffer_load_dwordx2 {vr(HX+8*rd+4,2)}, v{HA+2}, {sr(R_H,4)}, 0 offen {c.af}")
            return f
        return [hl(rd, p) for rd in range(3) for p in range(2)]
    def build_H():
        a(f"""
        s_lshr_b32 s{S_T1}, s{S_W}, 1
        s_mul_i32 s{S_T1}, s{S_T1}, {HS}
        s_add_u32 s{S_T1}, s{S_T1}, {L_H}
        """)
        for rd in range(3):
            d = HX + 8 * rd
            a(f"""
            v_add_u32 v{HA+1}, {64*rd}, v{HA}        ; cp
            v_lshrrev_b32 v{HA+2}, 1, v{HA+1}        ; unit
            v_lshrrev_b32 v{HA+3}, 4, v{HA+1}
            v_and_b32 v{HA+3}, 1, v{HA+3}
            v_xor_b32 v{HA+3}, v{HA+3}, v{HA+2}
            v_lshlrev_b32 v{HA+3}, 7, v{HA+3}
            v_and_b32 v{HA+1}, 1, v{HA+1}
            v_lshl_add_u32 v{HA+3}, v{HA+1}, 4, v{HA+3}
            v_add_u32 v{HA+3}, s{S_T1}, v{HA+3}
            """)
            for i in range(5):
                a(f"v_alignbit_b32 v{HT+i}, v{d+i+1}, v{d+i}, 16")
            if rd == 2:
                a("s_mov_b64 exec, 0x1ff")
            for s in range(4):
                a(f"v_add_u32 v{HA+1}, {s}, v{HA+2}\nv_and_b32 v{HA+1}, 3, v{HA+1}\nv_lshl_add_u32 v{HA+4}, v{HA+1}, 5, v{HA+3}")
                if s == 0:
                    a(f"ds_write_b128 v{HA+4}, {vr(HT,4)}")
                elif s == 1:
                    a(f"ds_write2_b32 v{HA+4}, v{d+1}, v{d+2} offset0:0 offset1:1\nds_write2_b32 v{HA+4}, v{d+3}, v{d+4} offset0:2 offset1:3")
                elif s == 2:
                    a(f"ds_write2_b32 v{HA+4}, v{HT+1}, v{HT+2} offset0:0 offset1:1\nds_write2_b32 v{HA+4}, v{HT+3}, v{HT+4} offset0:2 offset1:3")
                else:
                    a(f"ds_write_b128 v{HA+4}, {vr(d+2,4)}")
            a("s_mov_b64 exec, -1")
    def grp_N():
        return [lambda: nonce_issue(a, HA + 5, FV)]
    def grp_UF():
        def f():
            nonce_check(a, c, ops['N'], HA + 5, FV)
            a(f"""
            s_lshl_b32 s{S_FU}, s{S_XCD}, 2
            s_lshr_b32 s{S_T1}, s{S_IDX}, 3
            s_add_u32 s{S_FU}, s{S_FU}, s{S_T1}
            s_mul_i32 s{S_FU}, s{S_FU}, {32*FS}
            s_add_u32 s{S_FU}, s{S_FU}, {WS_FU}
            v_and_b32 v{FV}, 31, v0
            v_mul_u32_u24 v{FV}, {FS}, v{FV}
            """)
            return poll_issue(a, FD, FV, S_FU)
        return [f]
    def grp_U():
        def ul(i):
            def f():
                if i == 0:
                    poll_check(a, c, ops['UF'], FD, FV, S_FU)
                    a(f"""
                    s_lshl_b32 s{S_T0}, s{S_XCD}, 5
                    s_add_u32 s{S_T0}, s{S_T0}, s{S_IDX}
                    s_lshl_b32 s{S_T0}, s{S_T0}, 2
                    s_add_u32 s{S_T0}, s{S_T0}, s{S_W}
                    s_lshl_b32 s{S_T0}, s{S_T0}, 11
                    s_add_u32 s{S_FU}, s{S_T0}, {WS_U}
                    """)
                a(f"""
                s_lshr_b32 s{S_T1}, s{S_W}, 1
                s_mul_i32 s{S_T1}, s{S_T1}, {US-4096}
                s_lshl_b32 s{S_M}, s{S_W}, 11
                s_add_u32 s{S_M}, s{S_M}, s{S_T1}
                s_add_u32 m0, s{S_M}, {L_U}
                s_nop 0
                """)
                return a.vmem(f"buffer_load_dwordx4 v{LV}, {sr(R_WS,4)}, s{S_FU} offen offset:{i*1024} sc1 lds")
            return f
        return [ul(0), ul(1)]

    G = {f"S{j}": grp_S(j) for j in range(8)}
    G.update({"P": grp_setup2(), "KT": grp_KT(), "H": grp_H(), "UF": grp_UF(), "U": grp_U(), "Q0": grp_Q(0), "Q1": grp_Q(1), "N": grp_N()})
    order = (c.order or "S0 P KT S1 S2 S3 S4 N S5 S6 S7 H UF Q0 U Q1").split()
    assert order.index("KT") < order.index(f"S{c.a1_at}")
    pend = []
    def bar(j, op):
        a.waitvm(op)
        a("s_barrier")
        done_bar[0] = j
        stamp(a, c, j)
    for g in order:
        if g == "U":
            while pend:
                bar(*pend.pop(0))
        for f in G[g]:
            if g[0] == 'S' or g[0] == 'Q':
                n = int(g[1]) + (8 if g[0] == 'Q' else 0)
                while pend and pend[0][0] <= n - 3:
                    bar(*pend.pop(0))
            op = f()
            while pend and op - pend[0][1] >= c.ahead:
                bar(*pend.pop(0))
        ops[g] = op
        if g[0] == 'S':
            pend.append((int(g[1]), op))
    while pend:
        bar(*pend.pop(0))
    a.waitvm(ops['H'])
    build_H()
    bar(8, ops['Q0'])
    a(f"""
    v_cmp_gt_u32 vcc, 12, v0
    v_subrev_u32 v{HT}, 12, v0
    s_lshl_b32 s{S_T0}, s{S_R2}, 2
    v_cndmask_b32 v{HT}, v{HT}, v0, vcc          ; block i
    v_add_u32 v{HT}, s{S_T0}, v{HT}
    v_cmp_le_u32 vcc, 8, v{HT}                   ; valid: 4*r2 + i >= 8
    v_mov_b32 v{HT+1}, 0x3f803f80
    v_mul_u32_u24 v{HA}, {REC}, v0
    v_cndmask_b32 v{HT+4}, 0, v{HT+1}, vcc
    v_add_u32 v{HA}, {L_REC + 2048}, v{HA}
    v_mov_b32 v{HT+5}, v{HT+4}
    v_mov_b32 v{HT+6}, v{HT+4}
    v_mov_b32 v{HT+7}, v{HT+4}
    s_mov_b64 exec, 0xffffff
    ds_write_b128 v{HA}, {vr(HT+4,4)}
    s_mov_b64 exec, -1
    v_mov_b32 v{HT}, 0xff800000
    """)
    for j in range(4):
        a(f"v_cmp_le_u32 vcc, {28+j}, v0\ns_nop 1\nv_cndmask_b32 v{HT+8+j}, v{HT}, 0, vcc\nv_cndmask_b32 v{HT+12+j}, 0, v{HT}, vcc")
    a(f"""
    v_add_u32 v{HA}, {L_TAB}, v{LV}
    ds_write_b128 v{HA}, {vr(HT+8,4)}
    ds_write_b128 v{HA}, {vr(HT+12,4)} offset:1024
    v_mov_b32 v{HT}, 0
    v_lshlrev_b32 v{HA}, 2, v0
    v_add_u32 v{HA+1}, {L_PF}, v{HA}
    ds_write_b32 v{HA+1}, v{HT}
    v_add_u32 v{HA+1}, {L_U + 4096}, v{HA}
    ds_write_b32 v{HA+1}, v{HT}
    ds_write_b32 v{HA+1}, v{HT} offset:{US}
    """)
    bar(9, ops['Q1'])
    a("s_waitcnt vmcnt(0) lgkmcnt(0)\ns_barrier")
    stamp(a, c, 10)
    a(f"""
    s_lshr_b32 s{S_FK}, s{S_SL}, 1
    s_mul_i32 s{S_FK}, s{S_FK}, {128*FS}
    s_add_u32 s{S_FK}, s{S_FK}, {WS_FKV}
    s_lshl_b32 s{S_T1}, s{S_R2}, 3
    s_sub_u32 s{S_T1}, s{S_T1}, 16
    v_min_u32 v{FV}, 23, v0
    v_add_u32 v{FV}, s{S_T1}, v{FV}
    v_max_i32 v{FV}, 0, v{FV}
    v_mul_u32_u24 v{FV}, {FS}, v{FV}
    """)
    op = poll_issue(a, FD, FV, S_FK)
    poll_check(a, c, op, FD, FV, S_FK)
    stamp(a, c, 11)
    kvop = []
    for e in range(2):
        for i in range(3):
            a(f"""
            s_mul_i32 s{S_T0}, s{S_W}, 3
            s_add_u32 s{S_T0}, s{S_T0}, {i}
            s_mul_i32 s{S_M}, s{S_T0}, {REC}
            s_lshl_b32 s{S_T1}, s{S_R2}, 2
            s_add_u32 s{S_T0}, s{S_T0}, s{S_T1}
            s_lshl_b32 s{S_T1}, s{S_SL}, 7
            s_add_u32 s{S_T1}, s{S_T1}, s{S_T0}
            s_add_u32 s{S_T1}, s{S_T1}, {(e*64 - 8) & 0xffffffff:#x}
            s_lshl_b32 s{S_T1}, s{S_T1}, 11
            s_cmp_lt_u32 s{S_T0}, 8
            s_cselect_b32 s{S_T1}, 0x10000000, s{S_T1}
            s_add_u32 m0, s{S_M}, {L_REC + e*12*REC}
            s_nop 0
            """)
            a.vmem(f"buffer_load_dwordx4 v{LV}, {sr(R_WS,4)}, s{S_T1} offen sc1 lds")
            op = a.vmem(f"buffer_load_dwordx4 v{LV}, {sr(R_WS,4)}, s{S_T1} offen offset:1024 sc1 lds")
        kvop.append(op)
    a.waitvm(kvop[0])
    a("s_barrier")
    stamp(a, c, 12)
    for i in range(2):
        a(f"""
        s_lshl_b32 s{S_T0}, s{S_W}, 14
        s_add_u32 s{S_T0}, s{S_T0}, s{S_KB}
        s_mul_i32 s{S_M}, s{S_W}, {2*GS}
        s_add_u32 m0, s{S_M}, {L_QT + i*GS}
        s_add_u32 s{S_T0}, s{S_T0}, {i*8192}
        """)
        a.vmem(f"buffer_load_dwordx4 v{TV}, {sr(R_Q,4)}, s{S_T0} offen {c.af} lds")
    a(f"""
    s_and_b32 s{S_XO}, s{S_IDX}, 7
    s_lshl_b32 s{S_XO}, s{S_XO}, 7
    s_lshl_b32 s{S_T0}, s{S_W}, 14
    s_add_u32 s{S_XO}, s{S_XO}, s{S_T0}
    s_lshl_b32 s{S_M}, s{S_W}, 11
    s_lshr_b32 s{S_T2}, s{S_IDX}, 3
    s_lshl_b32 s{S_T2}, s{S_T2}, 1
    s_add_u32 s{S_T2}, s{S_T2}, s{S_XCD}
    """)
    for j in range(8):
        a(f"""
        s_add_u32 s{S_T0}, s{S_T2}, {j}
        s_and_b32 s{S_T0}, s{S_T0}, 7
        s_lshl_b32 s{S_T1}, s{S_T0}, 13
        s_add_u32 s{S_T1}, s{S_T1}, s{S_M}
        s_add_u32 m0, s{S_T1}, {L_WO}
        s_lshl_b32 s{S_T0}, s{S_T0}, 16
        s_add_u32 s{S_T0}, s{S_T0}, s{S_XO}
        """)
        a.vmem(f"buffer_load_dwordx4 v{OV}, {sr(R_WO,4)}, s{S_T0} offen {c.wof} lds")
        a.vmem(f"buffer_load_dwordx4 v{OV+1}, {sr(R_WO,4)}, s{S_T0} offen offset:1024 {c.wof} lds")
    a.waitvm(kvop[1])
    a("s_barrier")
    stamp(a, c, 13)
    a("s_waitcnt vmcnt(0)\ns_barrier")
    stamp(a, c, 14)
    dump_stamps(a, c)
    a("s_endpgm")

XA, WA, WQA = 2, 6, 8
VT0, VT1, VT2 = 9, 10, 11
QF = 12
SWT = 20
KVP = 28
HAD = 36
UAD, KAD, VA0, VA1 = 44, 45, 46, 47
DP = 48
TA = 50
UST = 51
LIN = 52
KVST = 53
ZST = 54
OST = 55
VN = 56
FA, FDT = 57, 58
MA = 59
WF = 64
ACC = 96
XF = 128
S_KVO, S_FKV, S_UO, S_FUo, S_ZO, S_FZo, S_OO, S_FOo, S_FZc, S_FOc, S_OL, S_LO, S_HI, S_SC, S_RET, S_RET1, S_BI, S_NB = range(S_A0, S_A0 + 18)
assert S_RET % 2 == 0
R_OUT, R_SK, R_DD = R_A, R_B, R_C

def compute_setup(a, c):
    a(f"""
    s_waitcnt lgkmcnt(0)
    """)
    srd(a, R_SK, P_SK, 4096)
    srd(a, R_DD, P_D, 1024)
    srd(a, R_WS, P_WS, WS_SIZE)
    srd(a, R_OUT, P_OUT, 0x400000)
    if c.stamps:
        a(f"v_writelane_b32 v{V_STAMP}, s74, 62")
    a(f"""
    s_or_b32 s{S_T0}, s2, s{S_W}
    s_cmp_eq_u32 s{S_T0}, 0
    s_cbranch_scc0 L_nolead
    s_add_u32 s{S_T3}, s{P_WS}, {WS_NONCE}
    s_addc_u32 s{S_T4}, s{P_WS+1}, 0
    s_load_dword s{S_NONCE}, s[{S_T3}:{S_T4}], 0 glc
    s_waitcnt lgkmcnt(0)
    s_add_u32 s{S_NONCE}, s{S_NONCE}, 0x9e3779b9
    s_max_u32 s{S_NONCE}, s{S_NONCE}, 1
    v_mov_b32 v{VT0}, s{S_NONCE}
    v_mov_b32 v{VT1}, 0
    s_mov_b64 exec, 1
    global_store_dword v{VT1}, v{VT0}, {sr(P_DBG,2)} sc1
    global_store_dword v{VT1}, v{VT0}, s[{S_T3}:{S_T4}] sc1
    s_mov_b64 exec, -1
    L_nolead:
    s_lshl_b32 s{S_T0}, s{S_XCD}, 2
    s_add_u32 s{S_T0}, s{S_T0}, s{S_W}
    s_lshl_b32 s{S_T0}, s{S_T0}, 3
    v_lshrrev_b32 v1, 3, v0
    v_add_u32 v{VT0}, s{S_T0}, v1
    v_lshlrev_b32 v{VT1}, 4, v{VT0}
    v_lshlrev_b32 v{VT2}, 2, v{VT0}
    """)
    a.vmem(f"buffer_load_dwordx4 {vr(KVP,4)}, v{VT1}, {sr(R_SK,4)}, 0 offen")
    op = a.vmem(f"buffer_load_dword v{KVP+4}, v{VT2}, {sr(R_DD,4)}, 0 offen")
    a(f"""
    v_and_b32 v{VT1}, 7, v0
    v_lshlrev_b32 v{UST}, 13, v{VT0}
    v_lshlrev_b32 v{VT2}, 4, v{VT1}
    v_sub_u32 v{ZST}, v{UST}, v{VT2}
    v_add_u32 v{ZST}, 112, v{ZST}
    v_add_u32 v{UST}, v{UST}, v{VT2}
    s_lshl_b32 s{S_T1}, s{S_IDX}, 7
    s_sub_u32 s{S_UO}, {WS_U + 4080 - 112}, s{S_T1}
    s_add_u32 s{S_ZO}, s{S_T1}, {WS_U}
    v_mul_u32_u24 v{TA}, {GS}, v{VT1}
    v_lshl_add_u32 v{TA}, v1, 2, v{TA}
    s_lshl_b32 s{S_T1}, s{S_W}, 5
    v_add_u32 v{TA}, s{S_T1}, v{TA}
    v_lshlrev_b32 v{LIN}, 4, v0
    v_and_b32 v{VT0}, 31, v0
    v_lshrrev_b32 v{VT1}, 5, v0
    v_bfe_u32 v{VT2}, v0, 1, 3
    v_xor_b32 v{VT2}, v{VT2}, v{VT1}
    v_lshlrev_b32 v{VT2}, 4, v{VT2}
    v_lshl_add_u32 v{VT2}, v{VT0}, 7, v{VT2}
    s_lshl_b32 s{S_T1}, s{S_W}, 12
    v_add_u32 v{XA}, s{S_T1}, v{VT2}
    v_xor_b32 v{XA+1}, 32, v{XA}
    v_xor_b32 v{XA+2}, 64, v{XA}
    v_xor_b32 v{XA+3}, 0x60, v{XA}
    v_lshlrev_b32 v{VT2}, 2, v{VT1}
    v_sub_u32 v{VT2}, v{VT0}, v{VT2}
    v_lshlrev_b32 v{VT2}, 4, v{VT2}
    v_add_u32 v{MA}, {L_TAB + 64}, v{VT2}
    v_bfe_u32 v{VT0}, v0, 2, 2               ; r
    v_lshl_add_u32 v{VT2}, v{VT1}, 3, v{VT0} ; row
    v_and_b32 v{WQA}, 3, v0
    v_lshlrev_b32 v{WQA}, 3, v{WQA}
    v_bfe_u32 v{WA}, v0, 4, 1
    v_lshl_add_u32 v{WQA}, v{WA}, 5, v{WQA}  ; nh*32 + c*8
    v_lshl_add_u32 v{WA}, v{VT2}, 7, v{WQA}
    v_lshrrev_b32 v{VT0}, 1, v{VT0}
    v_lshl_add_u32 v{WA}, v{VT0}, 6, v{WA}
    v_add_u32 v{WA}, {L_WR}, v{WA}
    v_xor_b32 v{WA+1}, 64, v{WA}
    v_lshl_add_u32 v{WQA}, v{VT2}, 6, v{WQA}
    s_mul_i32 s{S_T1}, s{S_W}, {REC}
    s_add_u32 s{S_T1}, s{S_T1}, {L_REC}
    v_add_u32 v{KAD}, s{S_T1}, v{LIN}
    v_and_b32 v{VT0}, 15, v0
    v_lshl_add_u32 v{VT0}, v{VT1}, 4, v{VT0}
    v_lshlrev_b32 v{VT0}, 4, v{VT0}          ; (hi*16 + d)*16
    v_and_b32 v{VT2}, 16, v0
    v_cmp_eq_u32 vcc, 0, v{VT2}
    v_add_u32 v{VA0}, 1024, v{VT0}
    v_add_u32 v{VA1}, 1536, v{VT0}
    v_mov_b32 v{VN}, 2048
    v_cndmask_b32 v{VA0}, v{VN}, v{VA0}, vcc
    v_cndmask_b32 v{VA1}, v{VN}, v{VA1}, vcc
    v_add_u32 v{VA0}, s{S_T1}, v{VA0}
    v_add_u32 v{VA1}, s{S_T1}, v{VA1}
    v_lshl_add_u32 v{KVST}, v{VT2}, 13, v{VT0}
    v_add_u32 v{KVST}, 1024, v{KVST}
    v_lshl_add_u32 v{OST}, v{VT2}, 9, v{VT0}
    ; scalars
    s_lshl_b32 s{S_T0}, s{S_R2}, 2
    s_add_u32 s{S_T0}, s{S_T0}, s{S_W}            ; tokblock
    s_and_b32 s{S_T1}, s{S_SL}, 7                 ; hg
    s_lshl_b32 s{S_KVO}, s{S_T1}, 8
    s_add_u32 s{S_KVO}, s{S_KVO}, s{S_T0}
    s_lshl_b32 s{S_KVO}, s{S_KVO}, 11
    s_lshl_b32 s{S_FKV}, s{S_T1}, 6
    s_add_u32 s{S_FKV}, s{S_FKV}, s{S_T0}
    s_lshl_b32 s{S_FKV}, s{S_FKV}, 1
    s_lshr_b32 s{S_T1}, s{S_SL}, 3
    s_add_u32 s{S_FKV}, s{S_FKV}, s{S_T1}
    s_mul_i32 s{S_FKV}, s{S_FKV}, {FS}
    s_add_u32 s{S_FKV}, s{S_FKV}, {WS_FKV}
    s_lshl_b32 s{S_OO}, s{S_T0}, 14
    s_lshl_b32 s{S_T1}, s{S_SL}, 9
    s_add_u32 s{S_OO}, s{S_OO}, s{S_T1}
    s_add_u32 s{S_OO}, s{S_OO}, {WS_O}
    s_lshl_b32 s{S_FOo}, s{S_T0}, 4
    s_add_u32 s{S_FOo}, s{S_FOo}, s{S_SL}
    s_mul_i32 s{S_FOo}, s{S_FOo}, {FS}
    s_add_u32 s{S_FOo}, s{S_FOo}, {WS_FO}
    s_lshl_b32 s{S_T0}, s{S_XCD}, 2
    s_add_u32 s{S_T0}, s{S_T0}, s{S_W}
    s_lshl_b32 s{S_T0}, s{S_T0}, 5
    s_mul_i32 s{S_FZc}, s{S_T0}, {FS}
    s_add_u32 s{S_FZc}, s{S_FZc}, {WS_FZ}
    s_add_u32 s{S_T0}, s{S_T0}, s{S_IDX}
    s_mul_i32 s{S_FUo}, s{S_T0}, {FS}
    s_add_u32 s{S_FUo}, s{S_FUo}, {WS_FU}
    s_lshl_b32 s{S_T0}, s{S_XCD}, 5
    s_add_u32 s{S_T0}, s{S_T0}, s{S_IDX}
    s_lshl_b32 s{S_T0}, s{S_T0}, 2
    s_add_u32 s{S_T0}, s{S_T0}, s{S_W}
    s_mul_i32 s{S_FZo}, s{S_T0}, {FS}
    s_add_u32 s{S_FZo}, s{S_FZo}, {WS_FZ}
    s_lshl_b32 s{S_T0}, s{S_XCD}, 2
    s_lshr_b32 s{S_T1}, s{S_IDX}, 3
    s_add_u32 s{S_T0}, s{S_T0}, s{S_T1}
    s_lshl_b32 s{S_T0}, s{S_T0}, 2
    s_add_u32 s{S_T0}, s{S_T0}, s{S_W}
    s_lshl_b32 s{S_OL}, s{S_T0}, 13
    s_add_u32 s{S_OL}, s{S_OL}, {WS_O}
    s_lshr_b32 s{S_T0}, s{S_T0}, 1
    s_mul_i32 s{S_FOc}, s{S_T0}, {16*FS}
    s_add_u32 s{S_FOc}, s{S_FOc}, {WS_FO}
    s_mov_b32 s{S_LO}, 0x2b800000
    s_mov_b32 s{S_HI}, 0x53800000
    s_mov_b32 s{S_SC}, 0x3eb8aa3b
    s_lshr_b32 s{S_T0}, s{S_W}, 1
    s_and_b32 s{S_T1}, s{S_W}, 1
    s_mul_i32 s{S_T2}, s{S_T0}, {US}
    s_lshl_b32 s{S_T3}, s{S_T1}, 8
    s_add_u32 s{S_T2}, s{S_T2}, s{S_T3}
    s_add_u32 s{S_T2}, s{S_T2}, {L_U + 240}
    v_and_b32 v{VT0}, 15, v0
    v_lshrrev_b32 v{VT1}, 4, v0
    v_sub_u32 v{VT2}, v{VT1}, v{VT0}
    v_lshlrev_b32 v{VT2}, 4, v{VT2}
    v_add_u32 v{UAD}, s{S_T2}, v{VT2}
    s_mul_i32 s{S_T2}, s{S_T0}, {HS}
    s_add_u32 s{S_T2}, s{S_T2}, {L_H}
    s_lshl_b32 s{S_T3}, s{S_T1}, 7
    v_and_b32 v{VT2}, 4, v0
    v_lshl_add_u32 v{VT2}, v{VT1}, 3, v{VT2}
    v_and_b32 v{VT1}, 8, v0
    v_lshl_add_u32 v{VT2}, v{VT1}, 4, v{VT2}
    v_add_u32 v{VT2}, s{S_T3}, v{VT2}
    v_and_b32 v{VT0}, 3, v0                  ; s
    """)
    for rho in range(4):
        for q in range(2):
            d = HAD + 2 * rho + q
            a(f"""
            v_add_u32 v1, {32*rho + 4*q}, v{VT2}      ; p
            v_lshrrev_b32 v{VT1}, 4, v1               ; unit
            v_bfe_u32 v{d}, v1, 7, 1
            v_xor_b32 v{d}, v{d}, v{VT1}
            v_lshlrev_b32 v{d}, 7, v{d}
            v_add_u32 v{VT1}, v{VT1}, v{VT0}
            v_and_b32 v{VT1}, 3, v{VT1}
            v_lshl_add_u32 v{d}, v{VT1}, 5, v{d}
            v_and_b32 v1, 15, v1
            v_lshl_add_u32 v{d}, v1, 1, v{d}
            v_add_u32 v{d}, s{S_T2}, v{d}
            """)
    a.waitvm(op)
    for m in range(4):
        for ch in range(2):
            src = KVP + 2 * ch + (m >> 1)
            if m & 1:
                a(f"v_and_b32 v{SWT+2*m+ch}, 0xffff0000, v{src}")
            else:
                a(f"v_lshlrev_b32 v{SWT+2*m+ch}, 16, v{src}")
    a(f"v_lshlrev_b32 v{DP}, 16, v{KVP+4}\nv_and_b32 v{DP+1}, 0xffff0000, v{KVP+4}")

def phase_A1(a, c, T):
    RK, RV, UK, RES, UV = T, T + 12, T + 20, T + 44, T + 60
    a(f"v_add_u32 v{VT0}, {L_KT}, v{TA}\nv_add_u32 v{VT1}, {L_KT + GS}, v{TA}\nv_add_u32 v{VT2}, {L_KT + 9*GS}, v{TA}")
    a(f"ds_read2_b32 {vr(RK,2)}, v{VT0} offset0:128 offset1:160")
    a(f"ds_read2_b32 {vr(RK+2,2)}, v{VT0} offset0:192 offset1:224")
    for i in range(4):
        a(f"ds_read2_b32 {vr(RK+4+2*i,2)}, v{VT1} offset0:{64*i} offset1:{64*i+32}")
    for i in range(4):
        a(f"ds_read2_b32 {vr(RV+2*i,2)}, v{VT2} offset0:{64*i} offset1:{64*i+32}")
    a("s_waitcnt lgkmcnt(4)")
    for i in range(1, 12):
        a(f"v_lshlrev_b32 v{UK+2*i}, 16, v{RK+i}\nv_and_b32 v{UK+2*i+1}, 0xffff0000, v{RK+i}")
    for i in range(8):
        a(f"v_pk_mul_f32 {vr(RES+2*i,2)}, {vr(SWT,2)}, {vr(UK+2*(i+4),2)}")
    for m in range(1, 4):
        for i in range(8):
            a(f"v_pk_fma_f32 {vr(RES+2*i,2)}, {vr(SWT+2*m,2)}, {vr(UK+2*(i+4-m),2)}, {vr(RES+2*i,2)}")
    a("s_waitcnt lgkmcnt(0)")
    for i in range(8):
        t = UV + 2 * (i & 1)
        a(f"v_lshlrev_b32 v{t}, 16, v{RV+i}\nv_and_b32 v{t+1}, 0xffff0000, v{RV+i}")
        a(f"v_pk_mul_f32 {vr(RES+2*i,2)}, {vr(RES+2*i,2)}, {vr(t,2)}")
    for ch in range(2):
        for d in range(4):
            a(f"v_cvt_pk_bf16_f32 v{KVP+4*ch+d}, v{RES+2*(7-2*d)+ch}, v{RES+2*(6-2*d)+ch}")
    a(f"s_add_u32 s{S_T1}, s{S_UO}, 4096")
    a.vmem(f"buffer_store_dwordx4 {vr(KVP,4)}, v{ZST}, {sr(R_WS,4)}, s{S_UO} offen sc1")
    return a.vmem(f"buffer_store_dwordx4 {vr(KVP+4,4)}, v{ZST}, {sr(R_WS,4)}, s{S_T1} offen sc1")

def kv_gemm(a, c, isV, hooks):
    for j in range(8):
        a("s_barrier")
        stamp(a, c, j)
        sl = j % 4
        for ks in range(4):
            a(f"ds_read_b128 {vr(XF+16*j+4*ks,4)}, v{XA+ks} offset:{L_XR + sl*16384}")
            for ft in range(2):
                for q in range(2):
                    a(f"ds_read_b64_tr_b16 {vr(WF+8*ks+4*ft+2*q,2)}, v{WA+ft} offset:{sl*8192 + (16*ks+4*q)*128}")
            if ks >= 1:
                mm(a, j, ks - 1, isV, 5)
        mm(a, j, 3, isV, 0)
        if j in hooks:
            hooks[j]()

def mm(a, j, ks, isV, left):
    for ft in range(2):
        a(f"s_waitcnt lgkmcnt({left + (2 if ft == 0 else 0)})")
        w, x = vr(WF + 8*ks + 4*ft, 4), vr(XF + 16*j + 4*ks, 4)
        acc = vr(ACC + 16*ft, 16)
        cc = "0" if (j == 0 and ks == 0) else acc
        if isV:
            a(f"v_mfma_f32_32x32x16_bf16 {acc}, {x}, {w}, {cc}")
        else:
            a(f"v_mfma_f32_32x32x16_bf16 {acc}, {w}, {x}, {cc}")

def kv_epilogue(a, c, isV):
    a("s_nop 7\ns_nop 3")
    op = None
    for ft in range(2):
        for h in range(2):
            d = WF + 8*ft + 4*h
            for i in range(4):
                a(f"v_cvt_pk_bf16_f32 v{d+i}, v{ACC+16*ft+8*h+2*i}, v{ACC+16*ft+8*h+2*i+1}")
            if isV:
                a(f"s_add_u32 s{S_T1}, s{S_KVO}, {WS_KV + ft*2*131072 + h*512}")
                op = a.vmem(f"buffer_store_dwordx4 {vr(d,4)}, v{KVST}, {sr(R_WS,4)}, s{S_T1} offen sc1")
            else:
                a(f"s_add_u32 s{S_T1}, s{S_KVO}, {WS_KV + (ft*2+h)*131072}")
                op = a.vmem(f"buffer_store_dwordx4 {vr(d,4)}, v{LIN}, {sr(R_WS,4)}, s{S_T1} offen sc1")
    return op

def q_gemm(a, c):
    QW = WF + 16
    acc = vr(ACC, 16)
    for h in range(2):
        a("s_barrier")
        stamp(a, c, 8 + h)
        n0 = 16 * h
        def rd(n):
            for q in range(2):
                a(f"ds_read_b64_tr_b16 {vr(QW+4*(n%4)+2*q,2)}, v{WQA} offset:{L_XR + (16*n+4*q)*64}")
        for n in range(n0, n0 + 3):
            rd(n)
        for n in range(n0, n0 + 16):
            if n + 3 < n0 + 16:
                rd(n + 3)
            left = min(3, n0 + 15 - n) * 2
            a(f"s_waitcnt lgkmcnt({left})")
            a(f"v_mfma_f32_32x32x16_bf16 {acc}, {vr(QW+4*(n%4),4)}, {vr(XF+4*n,4)}, {'0' if n == 0 else acc}")
    a("s_barrier")
    stamp(a, c, 10)

def q_epilogue(a, c):
    for i in range(16):
        a(f"v_mul_f32 v{ACC+i}, s{S_SC}, v{ACC+i}")
    for i in range(8):
        a(f"v_cvt_pk_bf16_f32 v{QF+i}, v{ACC+2*i}, v{ACC+2*i+1}")

def phase_A2(a, c, hooks):
    def reads(rho):
        b0 = XF + 64 * (rho & 1)
        L = []
        def ra(x):
            for q in range(2):
                L.append(f"ds_read_b64 {vr(b0+4*x+2*q,2)}, v{HAD+2*rho+q} offset:{2048*x}")
        def rb(x):
            L.append(f"ds_read_b128 {vr(b0+32+4*x,4)}, v{UAD} offset:{64*rho + 512*(7-x)}")
        ra(0)
        for x in range(8): rb(x)
        for x in range(1, 8): ra(x)
        return L
    r0 = reads(0)
    for l in r0[:14]: a(l)
    a("s_nop 1")
    q_epilogue(a, c)
    a("s_waitcnt lgkmcnt(4)")
    for l in r0[14:]: a(l)
    for rho in range(4):
        b0 = XF + 64 * (rho & 1)
        nxt = reads(rho + 1) if rho < 3 else []
        n = 0
        for x in range(8):
            for y in range(8 - x):
                if rho == 0 and y == 0 and x == 1:
                    a("s_waitcnt lgkmcnt(0)")
                t = vr(ACC + 4*(x + y), 4)
                cc = "0" if (rho == 0 and x == 0) else t
                a(f"v_mfma_f32_16x16x32_bf16 {t}, {vr(b0+4*x,4)}, {vr(b0+32+4*y,4)}, {cc}")
                n += 1
                if n >= (9 if rho == 0 else 1) and nxt:
                    a(nxt.pop(0))
                    if len(nxt) in (12,):
                        a("s_waitcnt lgkmcnt(3)")
        assert not nxt
        if rho < 3:
            a("s_waitcnt lgkmcnt(0)")
        if rho in hooks:
            hooks[rho]()
    lo, jn = a.lab("Lred"), a.lab("Lredj")
    a(f"""
    s_lshl_b32 s{S_T1}, s{S_W}, 12
    v_add_u32 v{VT0}, s{S_T1}, v{LIN}
    v_xor_b32 v{VT1}, 0x1000, v{VT0}
    s_lshl_b32 s{S_T2}, s{S_W}, 2
    s_add_u32 s{S_T2}, s{S_T2}, {L_PF}
    v_mov_b32 v{VT2}, s{S_T2}
    v_mov_b32 v1, 1
    s_bitcmp1_b32 s{S_W}, 0
    s_cbranch_scc1 {lo}
    """)
    vm0 = a.vm
    op = None
    for hf in range(2):
        a.vm = vm0
        keep, send = ACC + 16*hf, ACC + 16*(1-hf)
        sp = a.lab("Lsp")
        for i in range(4):
            a(f"ds_write_b128 v{VT0}, {vr(send+4*i,4)} offset:{L_RED + 1024*i}")
        a(f"""
        s_waitcnt lgkmcnt(0)
        ds_write_b32 v{VT2}, v1
        v_xor_b32 v{VT2}, 4, v{VT2}
        s_mov_b32 s{S_T0}, 0
        {sp}:
        ds_read_b32 v1, v{VT2}
        s_add_u32 s{S_T0}, s{S_T0}, 1
        s_cmp_gt_u32 s{S_T0}, {c.spin}
        s_waitcnt lgkmcnt(0)
        v_cmp_eq_u32 vcc, 0, v1
        s_cbranch_scc1 {sp}e
        s_cbranch_vccnz {sp}
        {sp}e:
        """)
        for i in range(4):
            a(f"ds_read_b128 {vr(WF+4*i,4)}, v{VT1} offset:{L_RED + 1024*i}")
        for i in range(4):
            a(f"s_waitcnt lgkmcnt({3-i})")
            a(f"v_pk_add_f32 {vr(WF+4*i,2)}, {vr(WF+4*i,2)}, {vr(keep+4*i,2)}")
            a(f"v_pk_add_f32 {vr(WF+4*i+2,2)}, {vr(WF+4*i+2,2)}, {vr(keep+4*i+2,2)}")
        if hf == 0:
            a(f"s_branch {jn}\n{lo}:")
    a(f"{jn}:")
    for i in range(4):
        a(f"v_cvt_pk_bf16_f32 v{WF+16+2*i}, v{WF+4*i}, v{WF+4*i+1}\nv_cvt_pk_bf16_f32 v{WF+16+2*i+1}, v{WF+4*i+2}, v{WF+4*i+3}")
    a(f"""
    v_and_b32 v{VT0}, 15, v0
    v_lshlrev_b32 v{VT0}, 4, v{VT0}
    v_and_b32 v{VT1}, 16, v0
    v_lshl_add_u32 v{VT0}, v{VT1}, 5, v{VT0}
    v_and_b32 v{VT1}, 32, v0
    v_lshl_add_u32 v{VT0}, v{VT1}, 3, v{VT0}
    v_permlane16_swap_b32 v{WF+16}, v{WF+18}
    v_permlane16_swap_b32 v{WF+17}, v{WF+19}
    v_permlane16_swap_b32 v{WF+20}, v{WF+22}
    v_permlane16_swap_b32 v{WF+21}, v{WF+23}
    s_lshl_b32 s{S_T1}, s{S_XCD}, 5
    s_add_u32 s{S_T1}, s{S_T1}, s{S_IDX}
    s_lshl_b32 s{S_T1}, s{S_T1}, 2
    s_add_u32 s{S_T1}, s{S_T1}, s{S_W}
    s_lshl_b32 s{S_T1}, s{S_T1}, 11
    s_add_u32 s{S_T1}, s{S_T1}, {WS_U}
    """)
    a.vmem(f"buffer_store_dwordx4 {vr(WF+16,4)}, v{VT0}, {sr(R_WS,4)}, s{S_T1} offen sc1")
    return a.vmem(f"buffer_store_dwordx4 {vr(WF+20,4)}, v{VT0}, {sr(R_WS,4)}, s{S_T1} offen offset:1024 sc1")

SB = (128, 144)
COLD, CDIAG = 160, 176
PB = 192
KFR = (200, 204)
VFR = (208, 216)
ZD = 224
OPK = 232

def load_masks(a):
    for g in range(4):
        a(f"ds_read_b128 {vr(CDIAG+4*g,4)}, v{MA} offset:{128*(3-g)}")
        a(f"ds_read_b128 {vr(COLD+4*g,4)}, v{MA} offset:{1024 + 128*(3-g)}")

def attn_head(a, c, e, hooks):
    oacc = vr(ACC + 16*e, 16)
    q = vr(QF + 4*e, 4)
    def off(i): return (e*12 + i) * REC
    def rdK(i): return f"ds_read_b128 {vr(KFR[i&1],4)}, v{KAD} offset:{off(i)}"
    def rdV(i, j): return f"ds_read_b128 {vr(VFR[i&1]+4*j,4)}, v{VA0+j} offset:{off(i)}"
    def qk(i):
        cc = vr(COLD, 16) if i == 0 else vr(CDIAG, 16) if i == 8 else "0"
        return f"v_mfma_f32_32x32x16_bf16 {vr(SB[i&1],16)}, {vr(KFR[i&1],4)}, {q}, {cc}"
    def pv(i, j):
        cc = "0" if (i == 0 and j == 0) else oacc
        return f"v_mfma_f32_32x32x16_bf16 {oacc}, {vr(VFR[i&1]+4*j,4)}, {vr(PB+4*j,4)}, {cc}"
    a(rdK(0)); a(rdK(1)); a(rdV(0, 0)); a(rdV(0, 1))
    a("s_waitcnt lgkmcnt(3)")
    a(qk(0))
    a("s_nop 7\ns_nop 3")
    for i in range(9):
        s = SB[i & 1]
        def ex(r): a(f"v_exp_f32 v{s+r}, v{s+r}\nv_exp_f32 v{s+r+1}, v{s+r+1}")
        def cv(k): a(f"v_cvt_pk_bf16_f32 v{PB+k}, v{s+2*k}, v{s+2*k+1}")
        ex(0)
        if i > 0:
            a(pv(i - 1, 1))
        ex(2)
        if i < 8:
            a("s_waitcnt lgkmcnt(0)\ns_nop 0")
            a(qk(i + 1))
        else:
            a("s_waitcnt lgkmcnt(0)\ns_nop 0")
        cv(0)
        ex(4)
        cv(1)
        ex(6)
        if i < 7: a(rdK(i + 2))
        cv(2)
        ex(8)
        cv(3)
        if i < 8: a(rdV(i + 1, 0))
        ex(10)
        a(pv(i, 0))
        cv(4)
        ex(12)
        if i < 8: a(rdV(i + 1, 1))
        cv(5)
        ex(14)
        cv(6)
        cv(7)
        if i in hooks:
            hooks[i]()
    a("s_nop 1")
    a(pv(8, 1))
    a("s_nop 7\ns_nop 3")
    ok = a.lab("Lok")
    l = ACC + 16*e + 8
    a(f"""
    v_cmp_nge_f32 vcc, v{l}, s{S_LO}
    v_cmp_nle_f32 s[{S_T3}:{S_T4}], v{l}, s{S_HI}
    s_or_b64 vcc, vcc, s[{S_T3}:{S_T4}]
    """)
    if not c.force_slow:
        a(f"s_cbranch_vccz {ok}")
    a(f"s_branch L_slow{e}\nL_back{e}:\n{ok}:")
    a(f"v_rcp_f32 v{l}, v{l}\ns_nop 0")
    for i in range(8):
        a(f"v_mul_f32 v{ACC+16*e+i}, v{l}, v{ACC+16*e+i}")
    for i in range(4):
        a(f"v_cvt_pk_bf16_f32 v{OPK+4*e+i}, v{ACC+16*e+2*i}, v{ACC+16*e+2*i+1}")
    a(f"s_add_u32 s{S_T1}, s{S_OO}, {e*0x100000}")
    return a.vmem(f"buffer_store_dwordx4 {vr(OPK+4*e,4)}, v{OST}, {sr(R_WS,4)}, s{S_T1} offen sc1")

def attn_slow(a, c, e):
    oacc = vr(ACC + 16*e, 16)
    q = vr(QF + 4*e, 4)
    s = SB[0]
    M, AK, AV0, AV1 = SB[1], SB[1] + 1, SB[1] + 2, SB[1] + 3
    a(f"L_slow{e}:")
    a(f"""
    s_lshl_b32 s{S_NB}, s{S_R2}, 2
    s_add_u32 s{S_NB}, s{S_NB}, s{S_W}
    s_sub_u32 s{S_NB}, 8, s{S_NB}
    s_max_i32 s{S_NB}, s{S_NB}, 0
    v_mov_b32 v{M}, 0xff800000
    """)
    for i in range(16):
        a(f"v_mov_b32 v{ACC+16*e+i}, 0")
    for p in range(2):
        lp, l1, l2, l3 = a.lab("Lsl"), a.lab("Lsl"), a.lab("Lsl"), a.lab("Lsl")
        a(f"""
        s_mov_b32 s{S_BI}, s{S_NB}
        {lp}:
        s_mul_i32 s{S_T1}, s{S_BI}, {REC}
        s_add_u32 s{S_T1}, s{S_T1}, {e*12*REC}
        v_add_u32 v{AK}, s{S_T1}, v{KAD}
        v_add_u32 v{AV0}, s{S_T1}, v{VA0}
        v_add_u32 v{AV1}, s{S_T1}, v{VA1}
        ds_read_b128 {vr(KFR[0],4)}, v{AK}
        ds_read_b128 {vr(VFR[0],4)}, v{AV0}
        ds_read_b128 {vr(VFR[0]+4,4)}, v{AV1}
        s_waitcnt lgkmcnt(0)
        s_cmp_eq_u32 s{S_BI}, 0
        s_cbranch_scc1 {l1}
        s_cmp_eq_u32 s{S_BI}, 8
        s_cbranch_scc1 {l2}
        v_mfma_f32_32x32x16_bf16 {vr(s,16)}, {vr(KFR[0],4)}, {q}, 0
        s_branch {l3}
        {l1}:
        v_mfma_f32_32x32x16_bf16 {vr(s,16)}, {vr(KFR[0],4)}, {q}, {vr(COLD,16)}
        s_branch {l3}
        {l2}:
        v_mfma_f32_32x32x16_bf16 {vr(s,16)}, {vr(KFR[0],4)}, {q}, {vr(CDIAG,16)}
        {l3}:
        s_nop 15
        """)
        if p == 0:
            for i in range(8):
                a(f"v_max3_f32 v{M}, v{M}, v{s+2*i}, v{s+2*i+1}")
        else:
            for i in range(16):
                a(f"v_sub_f32 v{s+i}, v{s+i}, v{M}")
            for i in range(16):
                a(f"v_exp_f32 v{s+i}, v{s+i}")
            a("s_nop 0")
            for k in range(8):
                a(f"v_cvt_pk_bf16_f32 v{PB+k}, v{s+2*k}, v{s+2*k+1}")
            a("s_nop 1")
            for j in range(2):
                a(f"v_mfma_f32_32x32x16_bf16 {oacc}, {vr(VFR[0]+4*j,4)}, {vr(PB+4*j,4)}, {oacc}")
            a("s_nop 15")
        a(f"s_add_u32 s{S_BI}, s{S_BI}, 1\ns_cmp_le_u32 s{S_BI}, 8\ns_cbranch_scc1 {lp}")
        if p == 0:
            a(f"v_mov_b32 v{AK}, v{M}\ns_nop 1\nv_permlane32_swap_b32 v{M}, v{AK}\ns_nop 1\nv_max_f32 v{M}, v{M}, v{AK}")
    a(f"s_branch L_back{e}")

def phase_A3(a, c, zop):
    RQ, T, RES = WF, WF + 8, WF + 24
    a(f"v_add_u32 v{VT0}, {L_QT}, v{TA}")
    for i in range(4):
        a(f"ds_read2_b32 {vr(RQ+2*i,2)}, v{VT0} offset0:{64*i} offset1:{64*i+32}")
    a.waitvm(zop)
    for i in range(8):
        t = T + 8 * (i & 1)
        for ch in range(2):
            z = ZD + 4*ch + (i >> 1)
            a(f"v_and_b32 v{t+ch}, 0xffff0000, v{z}" if i & 1 else f"v_lshlrev_b32 v{t+ch}, 16, v{z}")
            k = KVP + 4*ch + ((7 - i) >> 1)
            a(f"v_and_b32 v{t+2+ch}, 0xffff0000, v{k}" if (7 - i) & 1 else f"v_lshlrev_b32 v{t+2+ch}, 16, v{k}")
        if i == 0:
            a("s_waitcnt lgkmcnt(0)")
        a(f"v_lshlrev_b32 v{t+4}, 16, v{RQ+i}\nv_and_b32 v{t+5}, 0xffff0000, v{RQ+i}")
        a(f"v_pk_fma_f32 {vr(t,2)}, {vr(t+2,2)}, {vr(DP,2)}, {vr(t,2)}")
        a(f"v_pk_mul_f32 {vr(t,2)}, {vr(t,2)}, {vr(t+4,2)}")
        a(f"v_cvt_pk_bf16_f32 v{RES+i}, v{t}, v{t+1}")
    for i in range(4):
        a(f"ds_write2_b32 v{VT0}, v{RES+2*i}, v{RES+2*i+1} offset0:{64*i} offset1:{64*i+32}")
    a(f"""
    s_mul_i32 s{S_T1}, s{S_W}, {2*GS}
    s_add_u32 s{S_T1}, s{S_T1}, {L_QT}
    v_add_u32 v{VT0}, s{S_T1}, v{LIN}
    v_lshrrev_b32 v{VT1}, 3, v0
    v_and_b32 v{VT2}, 7, v0
    v_lshlrev_b32 v{VT2}, 4, v{VT2}
    v_lshl_add_u32 v{ZST}, v{VT1}, 11, v{VT2}       ; out voffset: row*2048 + chunk*16
    s_lshl_b32 s{S_T1}, s{S_IDX}, 2
    s_add_u32 s{S_T1}, s{S_T1}, s{S_W}
    s_lshl_b32 s{S_T1}, s{S_T1}, 15
    s_lshl_b32 s{S_T2}, s{S_XCD}, 7
    s_add_u32 s{S_T1}, s{S_T1}, s{S_T2}
    s_add_u32 s{S_T2}, s{S_T1}, 16384
    s_waitcnt lgkmcnt(0)
    s_barrier
    ds_read_b128 {vr(WF,4)}, v{VT0}
    ds_read_b128 {vr(WF+4,4)}, v{VT0} offset:{GS}
    s_waitcnt lgkmcnt(1)
    """)
    a.vmem(f"buffer_store_dwordx4 {vr(WF,4)}, v{ZST}, {sr(R_OUT,4)}, s{S_T1} offen")
    a("s_waitcnt lgkmcnt(0)")
    return a.vmem(f"buffer_store_dwordx4 {vr(WF+4,4)}, v{ZST}, {sr(R_OUT,4)}, s{S_T2} offen")

OF = 128
WOF = 192
def b3_addr(a):
    a(f"""
    v_bfe_u32 v{VT0}, v0, 2, 3               ; 4*(kq&1) + r
    v_and_b32 v{VT1}, 32, v0
    v_add_u32 v{VT1}, v{VT1}, v{VT0}
    v_lshrrev_b32 v{VT0}, 1, v{VT0}
    v_lshlrev_b32 v{VT0}, 5, v{VT0}
    v_lshl_add_u32 v{VT0}, v{VT1}, 7, v{VT0}
    v_and_b32 v{VT1}, 3, v0
    v_lshl_add_u32 v{VT0}, v{VT1}, 3, v{VT0}
    v_add_u32 v{XA}, {L_WO}, v{VT0}
    v_xor_b32 v{XA+1}, 32, v{XA}
    v_xor_b32 v{XA+2}, 64, v{XA}
    v_xor_b32 v{XA+3}, 0x60, v{XA}
    """)

def o_loads(a, e):
    ops = []
    a(f"s_add_u32 s{S_T1}, s{S_OL}, {e*0x100000}\ns_add_u32 s{S_T2}, s{S_T1}, 4096")
    for m in range(8):
        ops.append(a.vmem(f"buffer_load_dwordx4 {vr(OF+32*e+4*m,4)}, v{LIN}, {sr(R_WS,4)}, s{S_T1 if m < 4 else S_T2} offen offset:{(m&3)*1024} sc1"))
    return ops

def phase_B3(a, c, e, ops):
    def rd(m):
        for ct in range(4):
            for q in range(2):
                a(f"ds_read_b64_tr_b16 {vr(WOF+16*(m&1)+4*ct+2*q,2)}, v{XA+ct} offset:{(64*m+16*e+8*q)*128}")
    rd(0)
    for m in range(8):
        L = []
        if m < 7:
            sub = Asm();
            for ct in range(4):
                for q in range(2):
                    L.append(f"ds_read_b64_tr_b16 {vr(WOF+16*((m+1)&1)+4*ct+2*q,2)}, v{XA+ct} offset:{(64*(m+1)+16*e+8*q)*128}")
        a.waitvm(ops[m])
        for ct in range(4):
            a(f"s_waitcnt lgkmcnt({6 if m < 7 else 6 - 2*ct})")
            t = vr(ACC + 4*ct, 4)
            a(f"v_mfma_f32_16x16x32_bf16 {t}, {vr(WOF+16*(m&1)+4*ct,4)}, {vr(OF+32*e+4*m,4)}, {'0' if (e == 0 and m == 0) else t}")
            if L:
                a(L.pop(0)); a(L.pop(0))

def b3_epilogue(a, c):
    a(f"""
    s_mul_i32 s{S_T1}, s{S_W}, 2304
    s_add_u32 s{S_T1}, s{S_T1}, {L_ST}
    v_and_b32 v{VT0}, 15, v0
    v_mul_u32_u24 v{VT0}, 144, v{VT0}
    v_lshrrev_b32 v{VT1}, 4, v0
    v_lshl_add_u32 v{VT0}, v{VT1}, 3, v{VT0}
    v_add_u32 v{VT0}, s{S_T1}, v{VT0}
    v_lshrrev_b32 v{VT1}, 3, v0
    v_mul_u32_u24 v{VT1}, 144, v{VT1}
    v_and_b32 v{VT2}, 7, v0
    v_lshl_add_u32 v{VT1}, v{VT2}, 4, v{VT1}
    v_add_u32 v{VT1}, s{S_T1}, v{VT1}
    """)
    for ct in range(4):
        a(f"v_cvt_pk_bf16_f32 v{WF+8+2*ct}, v{ACC+4*ct}, v{ACC+4*ct+1}\nv_cvt_pk_bf16_f32 v{WF+9+2*ct}, v{ACC+4*ct+2}, v{ACC+4*ct+3}")
        a(f"ds_write_b64 v{VT0}, {vr(WF+8+2*ct,2)} offset:{32*ct}")
    a(f"""
    s_sub_u32 s{S_T1}, s{S_OL}, {WS_O}
    s_lshl_b32 s{S_T1}, s{S_T1}, 2
    s_and_b32 s{S_T2}, s{S_IDX}, 7
    s_lshl_b32 s{S_T2}, s{S_T2}, 7
    s_add_u32 s{S_T1}, s{S_T1}, s{S_T2}
    s_add_u32 s{S_T1}, s{S_T1}, 1024
    s_add_u32 s{S_T2}, s{S_T1}, 16384
    s_waitcnt lgkmcnt(0)
    ds_read_b128 {vr(WF+16,4)}, v{VT1}
    ds_read_b128 {vr(WF+20,4)}, v{VT1} offset:{8*144}
    s_waitcnt lgkmcnt(1)
    """)
    a.vmem(f"buffer_store_dwordx4 {vr(WF+16,4)}, v{ZST}, {sr(R_OUT,4)}, s{S_T1} offen")
    a("s_waitcnt lgkmcnt(0)")
    a.vmem(f"buffer_store_dwordx4 {vr(WF+20,4)}, v{ZST}, {sr(R_OUT,4)}, s{S_T2} offen")

def compute(a, c):
    a.vm = 0
    a("L_compute:")
    compute_setup(a, c)
    st = {}
    a(f"s_cmp_ge_u32 s{S_SL}, 8\ns_cbranch_scc1 L_vgemm")
    vm0 = a.vm
    for isV in range(2):
        a.vm = vm0
        if isV:
            a("L_vgemm:")
        def h_a1():
            st['n'] = nonce_issue(a, VN, FA)
            st['u'] = phase_A1(a, c, 192)
        def h_uflag():
            nonce_check(a, c, st['n'], VN, FA)
            a.waitvm(st['u'])
            flag_store(a, VN, S_FUo)
        kv_gemm(a, c, isV, {c.a1_at: h_a1, c.a1_at + 2: h_uflag})
        st['kv'] = kv_epilogue(a, c, isV)
        if not isV:
            a("s_branch L_qgemm")
    a("L_qgemm:")
    stamp(a, c, 16)
    q_gemm(a, c)
    def h_kvflag():
        a.waitvm(st['kv'])
        flag_store(a, VN, S_FKV)
        stamp(a, c, 17)
    st['z'] = phase_A2(a, c, {c.kvflag_at: h_kvflag})
    stamp(a, c, 11)
    load_masks(a)
    b3_addr(a)
    a("s_waitcnt lgkmcnt(0)\ns_barrier")
    stamp(a, c, 12)
    def h_zflag():
        a.waitvm(st['z'])
        flag_store(a, VN, S_FZo)
    st['o0'] = attn_head(a, c, 0, {c.zflag_at: h_zflag})
    a("s_barrier")
    stamp(a, c, 13)
    def h_o0flag():
        a.waitvm(st['o0'])
        flag_store(a, VN, S_FOo)
        a(f"v_and_b32 v{FA}, 31, v0\nv_mul_u32_u24 v{FA}, {FS}, v{FA}")
        st['zf'] = poll_issue(a, FDT, FA, S_FZc)
    def h_zload():
        poll_check(a, c, st['zf'], FDT, FA, S_FZc)
        a(f"s_add_u32 s{S_T1}, s{S_ZO}, 4096")
        a.vmem(f"buffer_load_dwordx4 {vr(ZD,4)}, v{UST}, {sr(R_WS,4)}, s{S_ZO} offen sc1")
        st['zl'] = a.vmem(f"buffer_load_dwordx4 {vr(ZD+4,4)}, v{UST}, {sr(R_WS,4)}, s{S_T1} offen sc1")
    st['o1'] = attn_head(a, c, 1, {c.oflag_at - 2: h_o0flag, 8: h_zload})
    stamp(a, c, 18)
    a(f"v_and_b32 v{FA}, 15, v0\nv_mul_u32_u24 v{FA}, {FS}, v{FA}")
    a("s_barrier")
    stamp(a, c, 14)
    phase_A3(a, c, st['zl'])
    stamp(a, c, 19)
    a.waitvm(st['o1'])
    a(f"s_add_u32 s{S_T1}, s{S_FOo}, {64*16*FS}")
    flag_store(a, VN, S_T1)
    op = poll_issue(a, FDT, FA, S_FOc)
    poll_check(a, c, op, FDT, FA, S_FOc)
    stamp(a, c, 20)
    ops0 = o_loads(a, 0)
    a(f"s_add_u32 s{S_FOc}, s{S_FOc}, {64*16*FS}")
    phase_B3(a, c, 0, ops0)
    stamp(a, c, 21)
    op = poll_issue(a, FDT, FA, S_FOc)
    poll_check(a, c, op, FDT, FA, S_FOc)
    stamp(a, c, 22)
    ops1 = o_loads(a, 1)
    phase_B3(a, c, 1, ops1)
    b3_epilogue(a, c)
    stamp(a, c, 23)
    if c.stamps:
        a("s_waitcnt vmcnt(0)")
        stamp(a, c, 24)
    dump_stamps(a, c)
    a("L_end:\ns_endpgm")
    attn_slow(a, c, 0)
    attn_slow(a, c, 1)

def generate(c):
    a = Asm()
    prologue(a, c)
    helper(a, c)
    compute(a, c)
    ref = open(os.path.join(os.path.dirname(os.path.abspath(__file__)), "cdna_kernels", NAME + ".s.ref")).read()
    hdr = []
    for l in ref.split("\n"):
        if l.startswith("; @launch"):
            hdr.append(f"; @launch grid=(256,1,1) block=(512,1,1) lds={LDS_SIZE}")
            break
        hdr.append(l)
    body = "\n".join(("" if l.endswith(":") else "    ") + l for l in a.lines)
    return "\n".join(hdr) + f"""
.amdgcn_target "amdgcn-amd-amdhsa--gfx950"
.text
.globl {NAME}_kernel
.p2align 8
.type {NAME}_kernel,@function
{NAME}_kernel:
{body}
.section .rodata,"a"
.p2align 6
.amdhsa_kernel {NAME}_kernel
  .amdhsa_next_free_vgpr 256
  .amdhsa_next_free_sgpr 102
  .amdhsa_accum_offset 256
  .amdhsa_group_segment_fixed_size 0
  .amdhsa_kernarg_size 96
  .amdhsa_user_sgpr_count 2
  .amdhsa_user_sgpr_kernarg_segment_ptr 1
  .amdhsa_system_sgpr_workgroup_id_x 1
.end_amdhsa_kernel
"""

if __name__ == "__main__":
    c = Cfg()
    out = os.path.join(os.path.dirname(os.path.abspath(__file__)), "cdna_kernels", NAME + ".s")
    for arg in sys.argv[1:]:
        k, v = arg.split("=", 1)
        if k == "out":
            out = v
        else:
            cur = getattr(c, k)
            setattr(c, k, (v not in ("0", "False")) if isinstance(cur, bool) else int(v) if isinstance(cur, int) else v)
    open(out, "w").write(generate(c))
    print("wrote", out)
```
